```python
import torch

def _softmax(x, axis=-1):
    return torch.softmax(x, dim=axis)

def _gelu(x):
    return torch.nn.functional.gelu(x, approximate='tanh')

def _silu(x):
    return torch.nn.functional.silu(x)

def _sigmoid(x):
    return torch.sigmoid(x)

def _layernorm(x, axis=-1, eps=1e-05):
    m = x.mean(dim=axis, keepdim=True)
    v = x.var(dim=axis, keepdim=True, unbiased=False)
    return (x - m) / torch.sqrt(v + eps)

def _scatter_add(tgt, idx, src, axis=0):
    return tgt.clone().index_add_(axis, idx, src)

def _segment_sum(src, seg, n):
    out = torch.zeros((n,) + src.shape[1:], dtype=src.dtype)
    return out.index_add_(0, seg, src)

def _pad(x, pw):
    flat = tuple((v for pair in reversed(pw) for v in pair))
    return torch.nn.functional.pad(x, flat)
kernel_name = 'interleave_layers__sliding_block__memory_aug_recurrent_mem_tr__prompt'

def setup_inputs():

    _w = lambda a: (lambda t: t.to(torch.bfloat16) if t.is_floating_point() else t)(torch.as_tensor(a))

    def _A_setup():
        B, S, D = (1, 2048, 448)
        return {'x': _w((lambda *s: torch.randn(*s, dtype=torch.bfloat16) * 0.05)(B, S, D)), 'wqkv': _w((lambda *s: torch.randn(*s, dtype=torch.bfloat16) * 0.05)(D, 3 * D)), 'wo': _w((lambda *s: torch.randn(*s, dtype=torch.bfloat16) * 0.05)(D, D))}
    _A_in = _A_setup()

    def _B_setup():
        B, S, Dm = (1, 2048, 448)
        H, Dh = (16, 256)
        M, seg = (8, 32)
        seg = min(seg, S)
        S = S // seg * seg
        return {'x': _w((lambda *s: torch.randn(*s, dtype=torch.bfloat16) * 0.05)(B, S, Dm)), 'mem0': _w((lambda *s: torch.randn(*s, dtype=torch.bfloat16) * 0.8)(B, M, Dm)), 'Wq': _w((lambda *s: torch.randn(*s, dtype=torch.bfloat16) * 1.6)(Dm, H, Dh) * Dm ** (-0.5)), 'Wk': _w((lambda *s: torch.randn(*s, dtype=torch.bfloat16) * 1.6)(Dm, H, Dh) * Dm ** (-0.5)), 'Wv': _w((lambda *s: torch.randn(*s, dtype=torch.bfloat16) * 0.8)(Dm, H, Dh) * Dm ** (-0.5)), 'Wo': _w((lambda *s: torch.randn(*s, dtype=torch.bfloat16) * 0.8)(H, Dh, Dm) * (H * Dh) ** (-0.5)), 'seg_len': seg}
    _B_in = _B_setup()
    return {'A_x': _A_in['x'], 'A_wqkv': _A_in['wqkv'], 'A_wo': _A_in['wo'], 'B_x': _B_in['x'], 'B_mem0': _B_in['mem0'], 'B_Wq': _B_in['Wq'], 'B_Wk': _B_in['Wk'], 'B_Wv': _B_in['Wv'], 'B_Wo': _B_in['Wo'], 'B_seg_len': _B_in['seg_len']}

def reference(A_x, A_wqkv, A_wo, B_x, B_mem0, B_Wq, B_Wk, B_Wv, B_Wo, B_seg_len):

    def _A_ref(x, wqkv, wo):
        B, S, D = x.shape
        H = 16
        Dh = D // H
        W = 256
        qkv = (lambda x, *d: x.permute(*d))((x @ wqkv).reshape(B, S, 3, H, Dh), 2, 0, 3, 1, 4)
        q, k, v = (qkv[0], qkv[1], qkv[2])
        scores = torch.einsum('bhqd,bhkd->bhqk', q, k) * Dh ** (-0.5)
        idx = torch.arange(S)
        mask = (idx[:, None] - idx[None, :] >= 0) & (idx[:, None] - idx[None, :] < W)
        scores = torch.where(mask[None, None], scores, -1000000000.0)
        p = _softmax(scores, axis=-1)
        o = torch.einsum('bhqk,bhkd->bhqd', p, v)
        return (lambda x, *d: x.permute(*d))(o, 0, 2, 1, 3).reshape(B, S, D) @ wo

    def _B_ref(x, mem0, Wq, Wk, Wv, Wo, seg_len):
        B, S, Dm = x.shape
        H, Dh = (Wq.shape[1], Wq.shape[2])
        M = mem0.shape[1]
        scale = Dh ** (-0.5)
        n_seg = S // seg_len
        L = M + seg_len
        idx = torch.arange(L)
        mask = (idx[:, None] < M) | (idx[:, None] >= idx[None, :])
        mem = mem0
        outs = []
        for s in range(n_seg):
            xs = x[:, s * seg_len:(s + 1) * seg_len, :].clone()
            h = torch.concatenate([mem, xs], axis=1)
            q = torch.einsum('btd,dhe->bhte', h, Wq)
            k = torch.einsum('btd,dhe->bhte', h, Wk)
            v = torch.einsum('btd,dhe->bhte', h, Wv)
            scores = torch.einsum('bhqe,bhke->bhqk', q, k) * scale
            scores = torch.where(mask[None, None], scores, -1000000000.0)
            p = _softmax(scores, axis=-1)
            o = torch.einsum('bhqk,bhke->bhqe', p, v)
            o = torch.einsum('bhte,hed->btd', o, Wo)
            mem = o[:, :M, :].clone()
            outs.append(o[:, M:, :])
        return torch.concatenate(outs, axis=1)
    x = A_x
    x = x + _A_ref(_layernorm(x, axis=-1), A_wqkv, A_wo)
    x = x + _B_ref(_layernorm(x, axis=-1), B_mem0, B_Wq, B_Wk, B_Wv, B_Wo, B_seg_len)
    x = x + _A_ref(_layernorm(x, axis=-1), A_wqkv, A_wo)
    x = x + _B_ref(_layernorm(x, axis=-1), B_mem0, B_Wq, B_Wk, B_Wv, B_Wo, B_seg_len)
    return x
```

```python
class Kern:
    def __init__(self, name, grid, block, lds=0, vgpr=256, sgpr=102, agpr=0):
        self.name=name; self.grid=grid; self.block=block; self.lds=lds
        self.vgpr=vgpr; self.sgpr=sgpr; self.agpr=agpr
        self.L=[]; self.nlab=0
    def __call__(self, s):
        for line in s.strip('\n').split('\n'):
            line=line.strip()
            if not line: continue
            if line.endswith(':'): self.L.append(line)
            else: self.L.append('    '+line)
    def lab(self, base='L'):
        self.nlab+=1
        return f'{self.name}_{base}{self.nlab}'
    def srd(self, d, b, size):
        self(f's_mov_b32 s{d}, s{b}\ns_and_b32 s{d+1}, s{b+1}, 0xffff\ns_mov_b32 s{d+2}, {size}\ns_mov_b32 s{d+3}, 0x20000')
    def text(self):
        o=[f'.globl {self.name}', '.p2align 8', f'.type {self.name},@function', f'{self.name}:']
        o+=self.L
        o.append('    s_endpgm')
        return '\n'.join(o)
    def desc(self):
        acc=(self.vgpr+3)//4*4
        nfv=self.vgpr if self.agpr==0 else acc+self.agpr
        return f'''.p2align 6
.amdhsa_kernel {self.name}
  .amdhsa_next_free_vgpr {nfv}
  .amdhsa_next_free_sgpr {self.sgpr}
  .amdhsa_accum_offset {acc}
  .amdhsa_group_segment_fixed_size 0
  .amdhsa_kernarg_size 104
  .amdhsa_user_sgpr_count 2
  .amdhsa_user_sgpr_kernarg_segment_ptr 1
  .amdhsa_system_sgpr_workgroup_id_x 1
.end_amdhsa_kernel'''

def assemble(header, kernels, launches):
    o=[header.rstrip('\n')]
    for (k,grid) in launches:
        o.append(f'; @launch kernel={k.name} grid=({grid},1,1) block=({k.block},1,1) lds={k.lds}')
    o.append('.amdgcn_target "amdgcn-amd-amdhsa--gfx950"')
    o.append('.text')
    for k in kernels: o.append(k.text())
    o.append('.section .rodata,"a"')
    for k in kernels: o.append(k.desc())
    return '\n'.join(o)+'\n'

KA_X=0; KA_WQKV=8; KA_WO=16; KA_BX=24; KA_MEM0=32; KA_WQ=40; KA_WK=48; KA_WV=56; KA_BWO=64; KA_SEG=72; KA_OUT=80; KA_DBG=88; KA_WS=96
WS_SIZE=268435456
def _al(x,a=4096): return (x+a-1)//a*a
_o=0
def _alloc(n):
    global _o
    r=_o; _o=_al(_o+n); return r
WQKVT=_alloc(1344*448*2)
WOT=_alloc(448*448*2)
WO2T=_alloc(16*448*256*2)
WT=_alloc(2*16*448*448*2)
QOFF=_alloc(2*16*2048*32*2)
KOFF=QOFF+16*2048*32*2
VTOFF=_alloc(16*32*2048*2)
OOFF=_alloc(2048*448*2)
X1=_alloc(2048*448*2)
X2=_alloc(2048*448*2)
X3=_alloc(2048*448*2)
XN1=_alloc(2048*448*2)
XN3=_alloc(2048*448*2)
AX=_alloc(2048*7168*2)
VOT=_alloc(64*16*448*32*2)
BT=_alloc(64*16*448*8*2)
EXOFF=_alloc(2*65*7168+2*64*16*1024)
MEMX=EXOFF
PX=EXOFF+2*65*7168
EXSZ=2*65*7168+2*64*16*1024
assert _o<WS_SIZE
```

```python
from genlib import *
RS=912
def bf16_round(k, dst, src):
    k(f'v_cvt_pk_bf16_f32 v{dst}, v{src}, v{src}')
    k(f'v_and_b32 v{dst}, 0xffff0000, v{dst}')

def make_ka1(layer):
    nm=f'ka1_{layer}'
    k=Kern(f'{nm}_kernel', 192, 256, lds=32*RS, vgpr=168, sgpr=60)
    k(f'''
    s_cmp_ge_u32 s2, 192
    s_cbranch_scc1 {nm}_end
    s_load_dwordx2 s[12:13], s[0:1], {KA_X}
    s_load_dwordx2 s[14:15], s[0:1], {KA_WS}
    v_and_b32 v1, 63, v0
    v_lshrrev_b32 v2, 6, v0
    s_nop 0
    v_readfirstlane_b32 s3, v2
    v_and_b32 v2, 15, v1
    v_lshrrev_b32 v3, 4, v1
    s_lshr_b32 s24, s2, 6        ; sec
    s_and_b32 s25, s2, 63
    s_waitcnt lgkmcnt(0)
    ''')
    k.srd(20,14,WS_SIZE)
    if layer==0:
        k.srd(8,12,2048*448*2); XB=0
    else:
        k.srd(8,14,WS_SIZE); XB=X2
    k(f'''
    v_lshrrev_b32 v4, 3, v1
    v_and_b32 v5, 7, v1            ; sub
    v_mul_u32_u24 v6, 896, v4
    v_lshl_add_u32 v6, v5, 4, v6
    s_lshl_b32 s26, s25, 5
    s_lshl_b32 s27, s3, 3
    s_add_u32 s26, s26, s27
    s_mul_i32 s26, s26, 896
    s_add_u32 s26, s26, {XB}
    ''')
    for j in range(7):
        k(f'buffer_load_dwordx4 v[{8+j*4}:{11+j*4}], v6, s[8:11], s26 offen offset:{j*128}')
    k(f'''
    v_mul_u32_u24 v7, 896, v2
    v_lshl_add_u32 v7, v3, 4, v7
    s_mul_i32 s28, s24, 448
    s_mul_i32 s29, s3, 112
    s_add_u32 s28, s28, s29
    s_mul_i32 s28, s28, 896
    s_add_u32 s28, s28, {WQKVT}
    ''')
    for j in range(1,7): k(f's_add_u32 s{28+j}, s{28+j-1}, 14336')
    k('s_waitcnt vmcnt(0)')
    for i in range(28):
        k(f'v_lshlrev_b32 v{40+2*i}, 16, v{8+i}')
        k(f'v_and_b32 v{41+2*i}, 0xffff0000, v{8+i}')
    def red8(r,t):
        k(f'''
        s_nop 1
        v_add_f32_dpp v{r}, v{r}, v{r} quad_perm:[1,0,3,2] row_mask:0xf bank_mask:0xf
        s_nop 1
        v_add_f32_dpp v{r}, v{r}, v{r} quad_perm:[2,3,0,1] row_mask:0xf bank_mask:0xf
        s_nop 1
        v_add_f32_dpp v{r}, v{r}, v{r} row_half_mirror row_mask:0xf bank_mask:0xf
        ''')
    k('v_add_f32 v36, v40, v41')
    for i in range(2,56): k(f'v_add_f32 v36, v36, v{40+i}')
    red8(36,37)
    k('v_mul_f32 v36, 0x3b124925, v36')
    k('v_mov_b32 v37, 0')
    for i in range(56):
        k(f'v_sub_f32 v38, v{40+i}, v36')
        k(f'v_fmac_f32 v37, v38, v38')
    red8(37,38)
    k('v_mul_f32 v37, 0x3b124925, v37')
    bf16_round(k,36,36)
    bf16_round(k,37,37)
    k('v_add_f32 v37, 0x3727c5ac, v37')
    bf16_round(k,37,37)
    k('v_sqrt_f32 v37, v37\ns_nop 0')
    bf16_round(k,37,37)
    k('v_rcp_f32 v37, v37\ns_nop 0')
    for i in range(56):
        k(f'v_sub_f32 v{40+i}, v{40+i}, v36')
    for i in range(28):
        k(f'v_cvt_pk_bf16_f32 v{8+i}, v{40+2*i}, v{41+2*i}')
    for i in range(28):
        k(f'v_lshlrev_b32 v{40+2*i}, 16, v{8+i}')
        k(f'v_and_b32 v{41+2*i}, 0xffff0000, v{8+i}')
    for i in range(56): k(f'v_mul_f32 v{40+i}, v{40+i}, v37')
    for i in range(28):
        k(f'v_cvt_pk_bf16_f32 v{8+i}, v{40+2*i}, v{41+2*i}')
    k(f'''
    s_mul_i32 s27, s3, {8*RS}
    v_mul_u32_u24 v6, {RS}, v4
    v_lshl_add_u32 v6, v5, 4, v6
    v_add_u32 v6, s27, v6
    ''')
    for j in range(7): k(f'ds_write_b128 v6, v[{8+j*4}:{11+j*4}] offset:{j*128}')
    ACC=8; WB=64; XF=148
    k(f'''
    v_mul_u32_u24 v6, {RS}, v2
    v_lshl_add_u32 v6, v3, 4, v6
    v_add_u32 v5, {16*RS}, v6
    s_waitcnt lgkmcnt(0)
    s_barrier
    ''')
    def wl(ks):
        b=WB+(ks%3)*28
        for j in range(7): k(f'buffer_load_dwordx4 v[{b+j*4}:{b+j*4+3}], v7, s[20:23], s{28+j} offen offset:{ks*64}')
    def xl(ks):
        b=XF+(ks%2)*8
        k(f'ds_read_b128 v[{b}:{b+3}], v6 offset:{ks*64}\nds_read_b128 v[{b+4}:{b+7}], v5 offset:{ks*64}')
    def gemm(swap):
        wl(0); wl(1); xl(0)
        for ks in range(14):
            if ks+2<14: wl(ks+2)
            if ks+1<14: xl(ks+1)
            vm = 14 if ks+2<14 else (7 if ks+1<14 else 0)
            k(f's_waitcnt vmcnt({vm}) lgkmcnt({2 if ks+1<14 else 0})')
            b=WB+(ks%3)*28; xb=XF+(ks%2)*8
            for j in range(7):
                for t in range(2):
                    a=ACC+(j*2+t)*4
                    c=f'v[{a}:{a+3}]' if ks>0 else '0'
                    W=f'v[{b+j*4}:{b+j*4+3}]'; X=f'v[{xb+t*4}:{xb+t*4+3}]'
                    if swap: k(f'v_mfma_f32_16x16x32_bf16 v[{a}:{a+3}], {X}, {W}, {c}')
                    else: k(f'v_mfma_f32_16x16x32_bf16 v[{a}:{a+3}], {W}, {X}, {c}')
        k('s_nop 7')
    k(f's_cmp_eq_u32 s24, 2\ns_cbranch_scc1 {nm}_v')
    gemm(False)
    k(f'''
    s_lshl_b32 s26, s24, 21          ; sec*2MB
    s_add_u32 s26, s26, {QOFF}
    s_lshl_b32 s27, s3, 19           ; 4w*131072
    s_add_u32 s26, s26, s27
    s_lshl_b32 s27, s25, 11          ; row0*64
    s_add_u32 s26, s26, s27
    v_lshlrev_b32 v64, 6, v2         ; t*64
    ''')
    for j in range(7):
        k(f'''
        v_lshlrev_b32 v65, 2, v3
        v_add_u32 v65, {16*j}, v65
        v_mul_u32_u24 v66, 37, v65
        v_lshrrev_b32 v66, 10, v66
        v_mul_u32_u24 v67, 28, v66
        v_sub_u32 v65, v65, v67
        v_lshl_add_u32 v65, v65, 1, v64
        v_lshl_add_u32 v65, v66, 17, v65
        ''')
        for t in range(2):
            a=ACC+(j*2+t)*4
            k(f'v_cvt_pk_bf16_f32 v{a}, v{a}, v{a+1}\nv_cvt_pk_bf16_f32 v{a+1}, v{a+2}, v{a+3}')
            k(f'buffer_store_dwordx2 v[{a}:{a+1}], v65, s[20:23], s26 offen offset:{t*1024}')
    k('s_endpgm')
    k(f'{nm}_v:')
    gemm(True)
    k(f'''
    s_lshl_b32 s27, s3, 19           ; 4w*32*4096
    s_add_u32 s26, s27, {VTOFF}
    s_lshl_b32 s27, s25, 6
    s_add_u32 s26, s26, s27
    v_lshlrev_b32 v64, 3, v3
    ''')
    for j in range(7):
        k(f'''
        v_add_u32 v65, {16*j}, v2
        v_mul_u32_u24 v66, 2341, v65
        v_lshrrev_b32 v66, 16, v66
        v_mul_u32_u24 v67, 28, v66
        v_sub_u32 v65, v65, v67
        v_lshl_add_u32 v65, v65, 12, v64
        v_lshl_add_u32 v65, v66, 17, v65
        ''')
        for t in range(2):
            a=ACC+(j*2+t)*4
            k(f'v_cvt_pk_bf16_f32 v{a}, v{a}, v{a+1}\nv_cvt_pk_bf16_f32 v{a+1}, v{a+2}, v{a+3}')
            k(f'buffer_store_dwordx2 v[{a}:{a+1}], v65, s[20:23], s26 offen offset:{t*32}')
    k(f'{nm}_end:')
    return k

def make_ka2():
    nm='ka2'
    k=Kern(f'{nm}_kernel', 512, 256, vgpr=248, sgpr=80)
    k(f'''
    s_cmp_ge_u32 s2, 512
    s_cbranch_scc1 {nm}_end
    s_load_dwordx2 s[14:15], s[0:1], {KA_WS}
    v_and_b32 v1, 63, v0
    v_lshrrev_b32 v2, 6, v0
    s_nop 0
    v_readfirstlane_b32 s3, v2
    v_and_b32 v2, 15, v1
    v_lshrrev_b32 v3, 4, v1
    s_lshl_b32 s24, s2, 2
    s_add_u32 s24, s24, s3
    s_lshr_b32 s25, s24, 7        ; head
    s_and_b32 s24, s24, 127       ; qt
    s_waitcnt lgkmcnt(0)
    ''')
    k.srd(20,14,WS_SIZE)
    k(f'''
    v_lshlrev_b32 v4, 6, v2
    v_lshl_add_u32 v4, v3, 4, v4
    s_lshl_b32 s26, s25, 17        ; h*131072
    s_lshl_b32 s27, s24, 10        ; qt*1024
    s_add_u32 s28, s26, s27
    s_add_u32 s28, s28, {QOFF}
    buffer_load_dwordx4 v[8:11], v4, s[20:23], s28 offen
    v_lshlrev_b32 v5, 12, v2
    v_lshl_add_u32 v5, v3, 3, v5
    ''')
    KF=12
    VF=80
    SA=148
    for j in range(17):
        k(f'''
        s_sub_i32 s29, s24, {16-j}
        s_max_i32 s29, s29, 0
        s_lshl_b32 s30, s29, 10
        s_add_u32 s30, s30, s26
        s_add_u32 s30, s30, {KOFF}
        buffer_load_dwordx4 v[{KF+j*4}:{KF+j*4+3}], v4, s[20:23], s30 offen
        s_lshl_b32 s30, s29, 5
        s_add_u32 s30, s30, s26
        s_add_u32 s30, s30, {VTOFF}
        s_add_u32 s31, s30, 65536
        ''')
        for dt,so in ((0,'s30'),(1,'s31')):
            if j<16: b=VF+(j//2)*8+dt*4+(j%2)*2
            else: b=VF+64+dt*2
            k(f'buffer_load_dwordx2 v[{b}:{b+1}], v5, s[20:23], {so} offen')
    k('s_waitcnt vmcnt(0)')
    for j in range(17):
        k(f'v_mfma_f32_16x16x32_bf16 v[{SA+j*4}:{SA+j*4+3}], v[{KF+j*4}:{KF+j*4+3}], v[8:11], 0')
    k(f'''
    s_nop 7
    v_mov_b32 v6, 0xff800000
    v_lshlrev_b32 v7, 2, v3      ; 4g
    ''')
    for r in range(4):
        k(f'''
        v_add_u32 v217, {r}, v7
        v_cmp_gt_u32 vcc, v217, v2
        s_nop 1
        v_cndmask_b32 v{SA+r}, v6, v{SA+r}, vcc
        v_cndmask_b32 v{SA+64+r}, v{SA+64+r}, v6, vcc
        ''')
    for j in range(16):
        lb=k.lab('m')
        k(f's_cmp_ge_u32 s24, {16-j}\ns_cbranch_scc1 {lb}')
        for r in range(4): k(f'v_mov_b32 v{SA+j*4+r}, v6')
        k(f'{lb}:')
    k(f'v_max3_f32 v216, v{SA}, v{SA+1}, v{SA+2}')
    for i in range(3,67,2): k(f'v_max3_f32 v216, v216, v{SA+i}, v{SA+i+1}')
    k(f'v_max_f32 v216, v216, v{SA+67}')
    CS=0.18898223650461362*1.4426950408889634
    import struct
    csb=struct.unpack('<I',struct.pack('<f',CS))[0]
    k(f'''
    v_mov_b32 v217, v216
    s_nop 1
    v_permlane16_swap_b32 v216, v217
    v_max_f32 v216, v216, v217
    v_mov_b32 v217, v216
    s_nop 1
    v_permlane32_swap_b32 v216, v217
    v_max_f32 v216, v216, v217
    s_mov_b32 s40, {csb}
    v_mul_f32 v216, s40, v216
    v_sub_f32 v216, 0, v216
    ''')
    for i in range(68): k(f'v_fma_f32 v{SA+i}, v{SA+i}, s40, v216')
    for i in range(68): k(f'v_exp_f32 v{SA+i}, v{SA+i}')
    k('s_nop 0')
    for j in range(17):
        b=KF+(j//2)*4+(j%2)*2
        k(f'v_cvt_pk_bf16_f32 v{b}, v{SA+j*4}, v{SA+j*4+1}\nv_cvt_pk_bf16_f32 v{b+1}, v{SA+j*4+2}, v{SA+j*4+3}')
    k(f'v_add_f32 v218, v{SA}, v{SA+1}')
    for i in range(2,68): k(f'v_add_f32 v218, v218, v{SA+i}')
    OA=220
    for p in range(8):
        for dt in range(2):
            c=f'v[{OA+dt*4}:{OA+dt*4+3}]' if p>0 else '0'
            k(f'v_mfma_f32_16x16x32_bf16 v[{OA+dt*4}:{OA+dt*4+3}], v[{VF+p*8+dt*4}:{VF+p*8+dt*4+3}], v[{KF+p*4}:{KF+p*4+3}], {c}')
    for dt in range(2):
        k(f'v_mfma_f32_16x16x16_bf16 v[{OA+dt*4}:{OA+dt*4+3}], v[{VF+64+dt*2}:{VF+65+dt*2}], v[{KF+32}:{KF+33}], v[{OA+dt*4}:{OA+dt*4+3}]')
    k(f'''
    v_mov_b32 v217, v218
    s_nop 1
    v_permlane16_swap_b32 v218, v217
    v_add_f32 v218, v218, v217
    v_mov_b32 v217, v218
    s_nop 1
    v_permlane32_swap_b32 v218, v217
    v_add_f32 v218, v218, v217
    v_rcp_f32 v218, v218
    s_nop 7
    ''')
    for i in range(8): k(f'v_mul_f32 v{OA+i}, v{OA+i}, v218')
    k(f'''
    v_cvt_pk_bf16_f32 v{OA}, v{OA}, v{OA+1}
    v_cvt_pk_bf16_f32 v{OA+1}, v{OA+2}, v{OA+3}
    v_cvt_pk_bf16_f32 v{OA+2}, v{OA+4}, v{OA+5}
    v_cvt_pk_bf16_f32 v{OA+3}, v{OA+6}, v{OA+7}
    v_mul_u32_u24 v4, 896, v2
    v_lshl_add_u32 v4, v3, 3, v4
    s_mul_i32 s29, s24, {16*896}
    s_mul_i32 s30, s25, 56
    s_add_u32 s29, s29, s30
    s_add_u32 s29, s29, {OOFF}
    buffer_store_dwordx2 v[{OA}:{OA+1}], v4, s[20:23], s29 offen
    v_cmp_gt_u32 vcc, 3, v3
    s_and_saveexec_b64 s[32:33], vcc
    buffer_store_dwordx2 v[{OA+2}:{OA+3}], v4, s[20:23], s29 offen offset:32
{nm}_end:
    ''')
    return k

def make_ka3(layer):
    nm=f'ka3_{layer}'
    k=Kern(f'{nm}_kernel', 128, 256, lds=1024, vgpr=168, sgpr=60)
    XO = X1 if layer==0 else X3
    XNO = XN1 if layer==0 else XN3
    k(f'''
    s_cmp_ge_u32 s2, 128
    s_cbranch_scc1 {nm}_end
    s_load_dwordx2 s[12:13], s[0:1], {KA_X}
    s_load_dwordx2 s[14:15], s[0:1], {KA_WS}
    v_and_b32 v1, 63, v0
    v_lshrrev_b32 v2, 6, v0
    s_nop 0
    v_readfirstlane_b32 s3, v2
    v_and_b32 v2, 15, v1
    v_lshrrev_b32 v3, 4, v1
    s_waitcnt lgkmcnt(0)
    ''')
    k.srd(20,14,WS_SIZE)
    if layer==0:
        k.srd(8,12,2048*448*2); XB=0
    else:
        k.srd(8,14,WS_SIZE); XB=X2
    k(f'''
    v_mul_u32_u24 v7, 896, v2
    v_lshl_add_u32 v7, v3, 4, v7
    s_mul_i32 s26, s2, {16*896}
    s_add_u32 s27, s26, {OOFF}
    s_mul_i32 s28, s3, {112*896}
    s_add_u32 s28, s28, {WOT}
    ''')
    for j in range(1,7): k(f's_add_u32 s{28+j}, s{28+j-1}, 14336')
    OF=8
    ACC=64
    WB=92
    XR=148
    for ks in range(14): k(f'buffer_load_dwordx4 v[{OF+ks*4}:{OF+ks*4+3}], v7, s[20:23], s27 offen offset:{ks*64}')
    k(f'''
    v_mul_u32_u24 v6, 896, v2
    v_lshl_add_u32 v6, v3, 3, v6
    s_mul_i32 s36, s3, 224
    s_add_u32 s37, s26, s36
    s_add_u32 s38, s37, {XB}
    ''')
    for j in range(7): k(f'buffer_load_dwordx2 v[{XR+j*2}:{XR+j*2+1}], v6, s[8:11], s38 offen offset:{j*32}')
    def wl(ks):
        b=WB+(ks%2)*28
        for j in range(7): k(f'buffer_load_dwordx4 v[{b+j*4}:{b+j*4+3}], v7, s[20:23], s{28+j} offen offset:{ks*64}')
    wl(0)
    for ks in range(14):
        if ks+1<14: wl(ks+1); k('s_waitcnt vmcnt(7)')
        else: k('s_waitcnt vmcnt(0)')
        b=WB+(ks%2)*28
        for j in range(7):
            a=ACC+j*4
            c=f'v[{a}:{a+3}]' if ks>0 else '0'
            k(f'v_mfma_f32_16x16x32_bf16 v[{a}:{a+3}], v[{b+j*4}:{b+j*4+3}], v[{OF+ks*4}:{OF+ks*4+3}], {c}')
    k('s_nop 7')
    for j in range(7):
        a=ACC+j*4
        k(f'v_cvt_pk_bf16_f32 v{a}, v{a}, v{a+1}\nv_cvt_pk_bf16_f32 v{a+1}, v{a+2}, v{a+3}')
        for h in range(2):
            k(f'''
            v_lshlrev_b32 v50, 16, v{a+h}
            v_and_b32 v51, 0xffff0000, v{a+h}
            v_lshlrev_b32 v52, 16, v{XR+j*2+h}
            v_and_b32 v53, 0xffff0000, v{XR+j*2+h}
            v_add_f32 v50, v50, v52
            v_add_f32 v51, v51, v53
            v_cvt_pk_bf16_f32 v{36+j*2+h}, v50, v51
            v_lshlrev_b32 v{8+j*4+h*2}, 16, v{36+j*2+h}
            v_and_b32 v{9+j*4+h*2}, 0xffff0000, v{36+j*2+h}
            ''')
    k(f's_add_u32 s38, s37, {XO}')
    for j in range(7): k(f'buffer_store_dwordx2 v[{36+j*2}:{37+j*2}], v6, s[20:23], s38 offen offset:{j*32}')
    def rowred(r,t,lofs):
        k(f'''
        v_mov_b32 v{t}, v{r}
        s_nop 1
        v_permlane16_swap_b32 v{r}, v{t}
        v_add_f32 v{r}, v{r}, v{t}
        v_mov_b32 v{t}, v{r}
        s_nop 1
        v_permlane32_swap_b32 v{r}, v{t}
        v_add_f32 v{r}, v{r}, v{t}
        ds_write_b32 v56, v{r} offset:{lofs}
        s_waitcnt lgkmcnt(0)
        s_barrier
        ds_read_b32 v{r}, v57 offset:{lofs}
        ds_read_b32 v{t}, v57 offset:{lofs+64}
        ds_read_b32 v58, v57 offset:{lofs+128}
        ds_read_b32 v59, v57 offset:{lofs+192}
        s_waitcnt lgkmcnt(0)
        v_add_f32 v{r}, v{r}, v{t}
        v_add_f32 v58, v58, v59
        v_add_f32 v{r}, v{r}, v58
        v_mul_f32 v{r}, 0x3b124925, v{r}
        ''')
    k(f'''
    v_lshlrev_b32 v57, 2, v2
    s_lshl_b32 s39, s3, 6
    v_add_u32 v56, s39, v57
    v_add_f32 v54, v8, v9
    ''')
    for i in range(2,28): k(f'v_add_f32 v54, v54, v{8+i}')
    rowred(54,55,0)
    k('v_mov_b32 v60, 0')
    for i in range(28):
        k(f'v_sub_f32 v61, v{8+i}, v54\nv_fmac_f32 v60, v61, v61')
    rowred(60,55,256)
    bf16_round(k,54,54)
    bf16_round(k,60,60)
    k('v_add_f32 v60, 0x3727c5ac, v60')
    bf16_round(k,60,60)
    k('v_sqrt_f32 v60, v60\ns_nop 0')
    bf16_round(k,60,60)
    k('v_rcp_f32 v60, v60\ns_nop 0')
    for i in range(28): k(f'v_sub_f32 v{8+i}, v{8+i}, v54')
    for i in range(14):
        k(f'v_cvt_pk_bf16_f32 v{36+i}, v{8+2*i}, v{9+2*i}')
        k(f'v_lshlrev_b32 v{8+2*i}, 16, v{36+i}\nv_and_b32 v{9+2*i}, 0xffff0000, v{36+i}')
    for i in range(28): k(f'v_mul_f32 v{8+i}, v{8+i}, v60')
    for i in range(14): k(f'v_cvt_pk_bf16_f32 v{36+i}, v{8+2*i}, v{9+2*i}')
    k(f's_add_u32 s38, s37, {XNO}')
    for j in range(7): k(f'buffer_store_dwordx2 v[{36+j*2}:{37+j*2}], v6, s[20:23], s38 offen offset:{j*32}')
    k(f'{nm}_end:')
    return k
```

```python
from genlib import *
def make_kb1(layer):
    XN = XN1 if layer==0 else XN3
    nm=f'kb1_{layer}'
    NWG=1792
    k=Kern(f'{nm}_kernel', NWG, 256, vgpr=168, sgpr=60)
    k(f'''
    s_cmp_ge_u32 s2, {NWG}
    s_cbranch_scc1 {nm}_end
    s_load_dwordx2 s[14:15], s[0:1], {KA_WS}
    v_and_b32 v1, 63, v0
    v_lshrrev_b32 v2, 6, v0
    s_nop 0
    v_readfirstlane_b32 s3, v2
    v_and_b32 v2, 15, v1
    v_lshrrev_b32 v3, 4, v1
    s_lshr_b32 s24, s2, 3
    s_and_b32 s25, s2, 7
    s_lshl_b32 s25, s25, 2
    s_add_u32 s25, s25, s3
    s_waitcnt lgkmcnt(0)
    ''')
    k.srd(20,14,WS_SIZE)
    k(f'''
    v_mul_u32_u24 v4, 896, v2
    v_lshl_add_u32 v4, v3, 4, v4
    s_mul_i32 s32, s25, {64*896}
    s_add_u32 s32, s32, {XN}
    s_add_u32 s33, s32, 14336
    s_add_u32 s34, s33, 14336
    s_add_u32 s35, s34, 14336
    s_mul_i32 s36, s24, {64*896}
    s_add_u32 s36, s36, {WT}
    s_add_u32 s37, s36, 14336
    s_add_u32 s38, s37, 14336
    s_add_u32 s39, s38, 14336
    ''')
    ACC=8; BUF=72
    def loads(ks):
        b=BUF+(ks%3)*32
        for mt in range(4): k(f'buffer_load_dwordx4 v[{b+mt*4}:{b+mt*4+3}], v4, s[20:23], s{32+mt} offen offset:{ks*64}')
        for nt in range(4): k(f'buffer_load_dwordx4 v[{b+16+nt*4}:{b+16+nt*4+3}], v4, s[20:23], s{36+nt} offen offset:{ks*64}')
    def gemm(swap):
        loads(0); loads(1)
        for ks in range(14):
            if ks+2<14: loads(ks+2); k('s_waitcnt vmcnt(16)')
            elif ks+1<14: k('s_waitcnt vmcnt(8)')
            else: k('s_waitcnt vmcnt(0)')
            b=BUF+(ks%3)*32
            for mt in range(4):
                for nt in range(4):
                    a=ACC+(mt*4+nt)*4
                    c=f'v[{a}:{a+3}]' if ks>0 else '0'
                    X=f'v[{b+mt*4}:{b+mt*4+3}]'; W=f'v[{b+16+nt*4}:{b+16+nt*4+3}]'
                    if swap: k(f'v_mfma_f32_16x16x32_bf16 v[{a}:{a+3}], {X}, {W}, {c}')
                    else: k(f'v_mfma_f32_16x16x32_bf16 v[{a}:{a+3}], {W}, {X}, {c}')
        k('s_nop 7')
    k(f's_cmp_ge_u32 s24, 112\ns_cbranch_scc1 {nm}_vo')
    gemm(False)
    k(f'''
    v_mul_u32_u24 v5, 14336, v2
    v_lshl_add_u32 v5, v3, 3, v5
    s_mul_i32 s40, s25, {64*14336}
    s_lshl_b32 s41, s24, 7
    s_add_u32 s40, s40, s41
    s_add_u32 s40, s40, {AX}
    s_add_u32 s41, s40, {16*14336}
    s_add_u32 s42, s41, {16*14336}
    s_add_u32 s43, s42, {16*14336}
    ''')
    for mt in range(4):
        for nt in range(4):
            a=ACC+(mt*4+nt)*4
            k(f'v_cvt_pk_bf16_f32 v{a}, v{a}, v{a+1}\nv_cvt_pk_bf16_f32 v{a+1}, v{a+2}, v{a+3}')
            k(f'buffer_store_dwordx2 v[{a}:{a+1}], v5, s[20:23], s{40+mt} offen offset:{nt*32}')
    k('s_endpgm')
    k(f'{nm}_vo:')
    gemm(True)
    k(f'''
    v_lshlrev_b32 v5, 6, v2
    v_lshl_add_u32 v5, v3, 4, v5
    s_mul_i32 s40, s25, {2*458752}
    s_sub_u32 s41, s24, 112
    s_lshl_b32 s41, s41, 12
    s_add_u32 s40, s40, s41
    s_add_u32 s40, s40, {VOT}
    s_add_u32 s41, s40, 458752
    ''')
    for mt in range(4):
        for nt in range(4):
            a=ACC+(mt*4+nt)*4
            k(f'v_cvt_pk_bf16_f32 v{a}, v{a}, v{a+1}\nv_cvt_pk_bf16_f32 v{a+1}, v{a+2}, v{a+3}')
            k(f'buffer_store_dwordx2 v[{a}:{a+1}], v5, s[20:23], s{40+(mt>>1)} offen offset:{nt*1024+(mt&1)*8}')
    k(f'{nm}_end:')
    return k

def make_kb3(layer):
    XN = XN1 if layer==0 else XN3
    XI = X1 if layer==0 else X3
    MEML = MEMX+layer*65*7168
    nm=f'kb3_{layer}'
    k=Kern(f'{nm}_kernel', 128, 256, lds=16*64*32, vgpr=256, sgpr=60)
    k(f'''
    s_cmp_ge_u32 s2, 128
    s_cbranch_scc1 {nm}_end
    s_load_dwordx2 s[12:13], s[0:1], {KA_OUT}
    s_load_dwordx2 s[14:15], s[0:1], {KA_WS}
    v_and_b32 v1, 63, v0
    v_lshrrev_b32 v2, 6, v0
    s_nop 0
    v_readfirstlane_b32 s3, v2
    v_and_b32 v2, 15, v1
    v_lshrrev_b32 v3, 4, v1
    v_and_b32 v4, 7, v1
    s_lshr_b32 s24, s2, 1      ; seg
    s_and_b32 s25, s2, 1       ; tt
    s_waitcnt lgkmcnt(0)
    ''')
    k.srd(20,14,WS_SIZE)
    if layer==0:
        k.srd(8,14,WS_SIZE); OB=X2
    else:
        k.srd(8,12,2048*448*2); OB=0
    HF=8
    AF=176
    SA=232
    k(f'''
    v_lshrrev_b32 v5, 1, v3
    v_lshlrev_b32 v5, 8, v5
    v_lshl_add_u32 v5, v4, 5, v5
    v_and_b32 v6, 1, v3
    v_lshl_add_u32 v5, v6, 4, v5
    s_mul_i32 s26, s24, 7168
    s_add_u32 s26, s26, {MEML}
    v_mul_u32_u24 v6, 896, v2
    v_lshl_add_u32 v6, v3, 4, v6
    s_mul_i32 s27, s24, {32*896}
    s_add_u32 s28, s27, {XN}
    s_add_u32 s29, s28, 14336
    ''')
    for ks in range(14):
        if ks<8: k(f'buffer_load_dwordx4 v[{HF+ks*4}:{HF+ks*4+3}], v5, s[20:23], s26 offen offset:{ks*512}')
        else:
            if ks==8: k('s_add_u32 s30, s26, 4096')
            k(f'buffer_load_dwordx4 v[{HF+ks*4}:{HF+ks*4+3}], v5, s[20:23], s30 offen offset:{(ks-8)*512}')
    for t,so in ((1,'s28'),(2,'s29')):
        for ks in range(14):
            k(f'buffer_load_dwordx4 v[{HF+(t*14+ks)*4}:{HF+(t*14+ks)*4+3}], v6, s[20:23], {so} offen offset:{ks*64}')
    k(f'''
    v_mul_u32_u24 v7, 14336, v2
    v_lshl_add_u32 v7, v3, 4, v7
    s_lshl_b32 s30, s24, 1
    s_add_u32 s30, s30, s25
    s_mul_i32 s30, s30, {16*14336}
    s_mul_i32 s31, s3, {4*896}
    s_add_u32 s30, s30, s31
    s_add_u32 s30, s30, {AX}
    s_lshl_b32 s31, s25, 4
    v_add_u32 v244, s31, v2
    v_lshlrev_b32 v245, 2, v3      ; 4g
    v_cmp_gt_u32 s[32:33], 2, v3   ; g<2
    v_mov_b32 v246, 0xff800000
    v_lshlrev_b32 v247, 5, v1
    s_lshl_b32 s31, s3, 13
    v_add_u32 v248, s31, v247
    s_mov_b32 s50, 0x3fb8aa3b
    ''')
    for hh in range(4):
        for ks in range(14): k(f'buffer_load_dwordx4 v[{AF+ks*4}:{AF+ks*4+3}], v7, s[20:23], s30 offen offset:{hh*896+ks*64}')
        k('s_waitcnt vmcnt(0)')
        for ks in range(14):
            for t in range(3):
                a=SA+t*4
                c=f'v[{a}:{a+3}]' if ks>0 else '0'
                k(f'v_mfma_f32_16x16x32_bf16 v[{a}:{a+3}], v[{HF+(t*14+ks)*4}:{HF+(t*14+ks)*4+3}], v[{AF+ks*4}:{AF+ks*4+3}], {c}')
        k('s_nop 7')
        for r in range(4):
            k(f'''
            v_cndmask_b32 v{SA+r}, v246, v{SA+r}, s[32:33]
            v_add_u32 v249, {r}, v245
            v_cmp_le_u32 vcc, v249, v244
            v_add_u32 v249, 16, v249
            v_cmp_le_u32 s[34:35], v249, v244
            s_nop 0
            v_cndmask_b32 v{SA+4+r}, v246, v{SA+4+r}, vcc
            v_cndmask_b32 v{SA+8+r}, v246, v{SA+8+r}, s[34:35]
            ''')
        k(f'v_max3_f32 v250, v{SA}, v{SA+1}, v{SA+2}')
        for i in range(3,11,2): k(f'v_max3_f32 v250, v250, v{SA+i}, v{SA+i+1}')
        k(f'''
        v_max_f32 v250, v250, v{SA+11}
        v_mov_b32 v251, v250
        s_nop 1
        v_permlane16_swap_b32 v250, v251
        v_max_f32 v250, v250, v251
        v_mov_b32 v251, v250
        s_nop 1
        v_permlane32_swap_b32 v250, v251
        v_max_f32 v250, v250, v251
        v_mul_f32 v250, 0xbfb8aa3b, v250
        ''')
        for i in range(12): k(f'v_fma_f32 v{SA+i}, v{SA+i}, s50, v250')
        for i in range(12): k(f'v_exp_f32 v{SA+i}, v{SA+i}')
        k(f's_nop 0\nv_add_f32 v250, v{SA}, v{SA+1}')
        for i in range(2,12): k(f'v_add_f32 v250, v250, v{SA+i}')
        k(f'''
        v_mov_b32 v251, v250
        s_nop 1
        v_permlane16_swap_b32 v250, v251
        v_add_f32 v250, v250, v251
        v_mov_b32 v251, v250
        s_nop 1
        v_permlane32_swap_b32 v250, v251
        v_add_f32 v250, v250, v251
        v_rcp_f32 v250, v250
        s_nop 0
        ''')
        for i in range(12): k(f'v_mul_f32 v{SA+i}, v{SA+i}, v250')
        k(f'''
        v_cvt_pk_bf16_f32 v252, v{SA+4}, v{SA+5}
        v_cvt_pk_bf16_f32 v253, v{SA+6}, v{SA+7}
        v_cvt_pk_bf16_f32 v254, v{SA+8}, v{SA+9}
        v_cvt_pk_bf16_f32 v255, v{SA+10}, v{SA+11}
        v_cvt_pk_bf16_f32 v250, v{SA}, v{SA+1}
        v_cvt_pk_bf16_f32 v251, v{SA+2}, v{SA+3}
        ds_write_b128 v248, v[252:255] offset:{hh*2048}
        ds_write_b64 v248, v[250:251] offset:{hh*2048+16}
        ''')
    k('s_waitcnt lgkmcnt(0)\ns_barrier')
    OA=8; PF=36; VB=48
    k(f'''
    v_lshlrev_b32 v5, 6, v2
    v_lshl_add_u32 v5, v3, 4, v5
    v_and_b32 v6, 1, v3
    v_lshlrev_b32 v6, 3, v6
    v_lshl_add_u32 v6, v2, 4, v6
    s_mul_i32 s26, s24, 458752
    s_mul_i32 s27, s3, {112*64}
    s_add_u32 s26, s26, s27
    s_add_u32 s26, s26, {VOT}
    s_add_u32 s27, s26, 4096
    s_mul_i32 s28, s24, {16*448*16}
    s_mul_i32 s29, s3, {112*16}
    s_add_u32 s28, s28, s29
    s_add_u32 s28, s28, {BT}
    ''')
    def vl(h):
        b=VB+(h%2)*42
        for j in range(7):
            so='s26' if j<4 else 's27'
            k(f'buffer_load_dwordx4 v[{b+j*4}:{b+j*4+3}], v5, s[20:23], {so} offen offset:{(j%4)*1024}')
        for j in range(7):
            k(f'buffer_load_dwordx2 v[{b+28+j*2}:{b+29+j*2}], v6, s[20:23], s28 offen offset:{j*256}')
        k(f's_add_u32 s26, s26, {448*64}\ns_add_u32 s27, s27, {448*64}\ns_add_u32 s28, s28, {448*16}')
        p=PF+(h%2)*6
        k(f'ds_read_b128 v[{p}:{p+3}], v247 offset:{h*2048}\nds_read_b64 v[{p+4}:{p+5}], v247 offset:{h*2048+16}')
    vl(0)
    for h in range(16):
        if h+1<16: vl(h+1); k('s_waitcnt vmcnt(14) lgkmcnt(2)')
        else: k('s_waitcnt vmcnt(0) lgkmcnt(0)')
        b=VB+(h%2)*42; p=PF+(h%2)*6
        for j in range(7):
            a=OA+j*4
            c=f'v[{a}:{a+3}]' if h>0 else '0'
            k(f'v_mfma_f32_16x16x32_bf16 v[{a}:{a+3}], v[{b+j*4}:{b+j*4+3}], v[{p}:{p+3}], {c}')
        for j in range(7):
            a=OA+j*4
            k(f'v_mfma_f32_16x16x16_bf16 v[{a}:{a+3}], v[{b+28+j*2}:{b+29+j*2}], v[{p+4}:{p+5}], v[{a}:{a+3}]')
    XR=140
    k(f'''
    v_mul_u32_u24 v6, 896, v2
    v_lshl_add_u32 v6, v3, 3, v6
    s_mul_i32 s26, s2, {16*896}
    s_mul_i32 s27, s3, 224
    s_add_u32 s26, s26, s27
    s_add_u32 s27, s26, {XI}
    s_add_u32 s28, s26, {OB}
    ''')
    for j in range(7): k(f'buffer_load_dwordx2 v[{XR+j*2}:{XR+j*2+1}], v6, s[20:23], s27 offen offset:{j*32}')
    k('s_waitcnt vmcnt(0)\ns_nop 4')
    for j in range(7):
        a=OA+j*4
        k(f'v_cvt_pk_bf16_f32 v{a}, v{a}, v{a+1}\nv_cvt_pk_bf16_f32 v{a+1}, v{a+2}, v{a+3}')
        for h in range(2):
            k(f'''
            v_lshlrev_b32 v160, 16, v{a+h}
            v_and_b32 v161, 0xffff0000, v{a+h}
            v_lshlrev_b32 v162, 16, v{XR+j*2+h}
            v_and_b32 v163, 0xffff0000, v{XR+j*2+h}
            v_add_f32 v160, v160, v162
            v_add_f32 v161, v161, v163
            v_cvt_pk_bf16_f32 v{a+h}, v160, v161
            ''')
        k(f'buffer_store_dwordx2 v[{a}:{a+1}], v6, s[8:11], s28 offen offset:{j*32}')
    k(f'{nm}_end:')
    return k
```

```python
from genlib import *
RS=912
def wreg(i):
    if i<64: return f'a[{i*4}:{i*4+3}]'
    b=110+(i-64)*4
    return f'v[{b}:{b+3}]'
STAMP=200*1024*1024
import os
DOSTAMP=os.environ.get('STAMP','0')=='1'
def make_chain(layer):
    XN = XN1 if layer==0 else XN3
    MEML = MEMX+layer*65*7168
    PXL = PX+layer*64*16*1024
    nm=f'chain{layer}'
    k=Kern(f'{nm}_kernel', 44, 256, lds=2*32*RS+4*3*1024+7168+64, vgpr=256, sgpr=80, agpr=256)
    RED=2*32*RS
    MLDS=RED+4*3*1024
    def stamp(slot,va=254,vb=255):
        if not DOSTAMP: return
        k(f'''
        s_memtime s[60:61]
        s_waitcnt lgkmcnt(0)
        v_mov_b32 v{va}, s60
        s_lshl_b32 s62, s2, 14
        s_lshl_b32 s63, s42, 5
        s_add_u32 s62, s62, s63
        s_lshl_b32 s63, s3, 12
        s_add_u32 s62, s62, s63
        s_add_u32 s62, s62, {STAMP+slot*4}
        v_mov_b32 v{vb}, 0
        s_mov_b64 s[64:65], exec
        s_mov_b64 exec, 1
        buffer_store_dword v{va}, v{vb}, s[20:23], s62 offen
        s_mov_b64 exec, s[64:65]
        ''')
    k(f'''
    s_cmp_ge_u32 s2, 44
    s_cbranch_scc1 {nm}_end
    s_load_dwordx2 s[14:15], s[0:1], {KA_WS}
    v_and_b32 v1, 63, v0
    v_lshrrev_b32 v2, 6, v0
    s_nop 0
    v_readfirstlane_b32 s3, v2       ; wave
    v_and_b32 v2, 15, v1      ; l&15
    v_lshrrev_b32 v3, 4, v1   ; g
    v_and_b32 v4, 7, v1       ; l&7
    s_waitcnt lgkmcnt(0)
    ''')
    k.srd(20,14,WS_SIZE)
    k(f'''
    s_cmp_ge_u32 s2, 16
    s_cbranch_scc1 {nm}_ucu
    ''')
    k(f'''
    v_mul_u32_u24 v5, 896, v2
    v_lshl_add_u32 v5, v3, 4, v5
    s_mul_i32 s24, s2, 448
    s_mul_i32 s25, s3, 112
    s_add_u32 s24, s24, s25
    s_mul_i32 s24, s24, 896
    s_add_u32 s24, s24, {WT}
    ''')
    for j in range(7):
        for ks in range(14):
            k(f'buffer_load_dwordx4 {wreg(j*14+ks)}, v5, s[20:23], s24 offen offset:{ks*64}')
        if j<6: k('s_add_u32 s24, s24, 14336')
    k(f'''
    s_mul_i32 s25, s3, 1792
    v_lshlrev_b32 v6, 4, v1
    v_add_u32 v6, s25, v6
    v_add_u32 v251, {MLDS}, v6
    v_lshrrev_b32 v7, 1, v3
    v_lshlrev_b32 v7, 8, v7
    v_lshl_add_u32 v7, v4, 5, v7
    v_and_b32 v252, 1, v3
    v_lshl_add_u32 v7, v252, 4, v7
    v_add_u32 v7, {MLDS}, v7
    v_lshlrev_b32 v252, 5, v4
    v_lshl_add_u32 v252, v3, 3, v252
    v_add_u32 v252, s25, v252
    v_add_u32 v252, {MLDS}, v252
    s_mov_b32 s36, -1
    s_mov_b32 s37, 0x0000ffff           ; 48 lanes
    s_mul_i32 s25, s3, 224
    v_mul_u32_u24 v8, {RS}, v2
    v_lshl_add_u32 v8, v3, 3, v8
    v_add_u32 v8, s25, v8
    v_add_u32 v9, {16*RS}, v8
    v_lshlrev_b32 v10, 4, v1
    s_mul_i32 s26, s3, 3072
    s_add_u32 s26, s26, {RED}
    v_add_u32 v11, s26, v10
    v_lshl_add_u32 v246, v3, 3, v4
    v_lshlrev_b32 v247, 3, v246
    v_add_u32 v247, 512, v247
    v_lshlrev_b32 v246, 4, v246
    ; masks
    v_cmp_gt_u32 s[30:31], 8, v2
    v_cmp_gt_u32 s[32:33], 2, v3        ; g<2
    s_mov_b32 s34, -1
    s_mov_b32 s35, 0x00ffffff           ; 56 lanes
    s_mov_b32 s40, {MEML}
    s_lshl_b32 s41, s2, 10
    s_add_u32 s41, s41, {PXL}
    s_mov_b32 s42, 0                    ; step
    s_mul_i32 s43, s3, {8*896}
    s_add_u32 s43, s43, {XN}
    s_mul_i32 s44, s3, {8*RS}
    ''')
    def dma(bufsel_sgpr):
        k('s_mov_b64 exec, s[34:35]')
        k(f's_add_u32 s45, s44, {bufsel_sgpr}')
        k('s_mov_b32 s46, s43')
        for r in range(8):
            k('s_mov_b32 m0, s45')
            k('s_nop 0')
            k('buffer_load_dwordx4 v10, s[20:23], s46 offen lds')
            if r<7:
                k(f's_add_u32 s45, s45, {RS}'); k('s_add_u32 s46, s46, 896')
        k('s_mov_b64 exec, -1')
        k(f's_add_u32 s43, s43, {32*896}')
    k('s_mov_b32 s47, 0')
    dma('s47')
    k(f'{nm}_sloop:')
    stamp(0)
    k(f's_xor_b32 s48, s47, {32*RS}')
    k(f's_cmp_ge_u32 s42, 63\ns_cbranch_scc1 {nm}_snodma')
    dma('s48')
    k(f'{nm}_snodma:')
    k(f'''
    v_mov_b32 v44, 0
    v_mov_b32 v45, 0
    v_mov_b32 v46, 0
    v_mov_b32 v47, 0
{nm}_spoll:
    buffer_load_dwordx4 v[40:43], v6, s[20:23], s40 offen sc1
    s_mov_b64 exec, s[36:37]
    buffer_load_dwordx4 v[44:47], v6, s[20:23], s40 offen offset:1024 sc1
    s_mov_b64 exec, -1
    s_waitcnt vmcnt(0)
    v_max3_u32 v248, v40, v42, v44
    v_max_u32 v248, v248, v46
    v_cmp_eq_u32 vcc, -1, v248
    s_cbranch_vccnz {nm}_spoll
    ds_write_b128 v251, v[40:43]
    s_mov_b64 exec, s[36:37]
    ds_write_b128 v251, v[44:47] offset:1024
    s_mov_b64 exec, -1
    s_waitcnt lgkmcnt(0)
    s_barrier
    ''')
    for ks in range(14):
        k(f'ds_read_b128 v[{40+ks*4}:{43+ks*4}], v7 offset:{ks*512}')
    stamp(1)
    for p in range(3):
        k(f'ds_read_b64 v[{96+p*4}:{97+p*4}], v252 offset:{p*512}')
        k(f'ds_read_b64 v[{98+p*4}:{99+p*4}], v252 offset:{p*512+256}')
    k(f'ds_read_b64 v[108:109], v252 offset:1536')
    k('v_add_u32 v249, s47, v8\nv_add_u32 v250, s47, v9')
    for ks in range(14):
        if ks<=7: k(f's_waitcnt lgkmcnt({min(15,20-ks)})')
        if ks==8: k('s_waitcnt lgkmcnt(8)')
        for j in range(7):
            a=12+j*4
            c = f'v[{a}:{a+3}]' if ks>0 else '0'
            k(f'v_mfma_f32_16x16x32_bf16 v[{a}:{a+3}], {wreg(j*14+ks)}, v[{40+ks*4}:{43+ks*4}], {c}')
        if ks==7:
            for t,av in ((0,249),(1,250)):
                b=40+t*14
                for p in range(3):
                    k(f'ds_read2_b64 v[{b+p*4}:{b+p*4+3}], v{av} offset0:{p*8} offset1:{p*8+4}')
                k(f'ds_read_b64 v[{b+12}:{b+13}], v{av} offset:192')
    k('s_nop 7')
    for p in range(3):
        a=12+p*8
        k(f'v_cvt_pk_bf16_f32 v{a}, v{a}, v{a+1}\nv_cvt_pk_bf16_f32 v{a+1}, v{a+2}, v{a+3}\nv_cvt_pk_bf16_f32 v{a+2}, v{a+4}, v{a+5}\nv_cvt_pk_bf16_f32 v{a+3}, v{a+6}, v{a+7}')
    k('v_cvt_pk_bf16_f32 v36, v36, v37\nv_cvt_pk_bf16_f32 v37, v38, v39')
    k('s_waitcnt vmcnt(0) lgkmcnt(0)')
    k('s_nop 1')
    for (acc,fb) in ((72,96),(76,40),(80,54)):
        for p in range(3):
            c = f'v[{acc}:{acc+3}]' if p>0 else '0'
            k(f'v_mfma_f32_16x16x32_bf16 v[{acc}:{acc+3}], v[{fb+p*4}:{fb+p*4+3}], v[{12+p*8}:{15+p*8}], {c}')
    for (acc,fb) in ((72,96),(76,40),(80,54)):
        k(f'v_mfma_f32_16x16x16_bf16 v[{acc}:{acc+3}], v[{fb+12}:{fb+13}], v[36:37], v[{acc}:{acc+3}]')
    k(f'''
    s_nop 7
    s_nop 1
    ds_write_b128 v11, v[72:75]
    ds_write_b128 v11, v[76:79] offset:1024
    ds_write_b128 v11, v[80:83] offset:2048
    s_waitcnt lgkmcnt(0)
    s_barrier
    s_cmp_lg_u32 s3, 0
    s_cbranch_scc1 {nm}_snext
    ''')
    stamp(2)
    for w in range(1,4):
        for t in range(3):
            k(f'ds_read_b128 v[{12+(w-1)*12+t*4}:{15+(w-1)*12+t*4}], v11 offset:{w*3072+t*1024}')
    k('s_waitcnt lgkmcnt(0)')
    for i in range(12):
        k(f'v_add_f32 v{72+i}, v{72+i}, v{12+i}')
        k(f'v_add_f32 v{24+i}, v{24+i}, v{36+i}')
    for i in range(12):
        k(f'v_add_f32 v{72+i}, v{72+i}, v{24+i}')
    k(f'''
    v_mov_b32 v84, 0xff800000
    v_cndmask_b32 v72, v84, v72, s[32:33]
    v_cndmask_b32 v73, v84, v73, s[32:33]
    v_cndmask_b32 v74, v84, v74, s[32:33]
    v_cndmask_b32 v75, v84, v75, s[32:33]
    v_max3_f32 v85, v72, v73, v74
    v_max3_f32 v85, v85, v75, v76
    v_max3_f32 v85, v85, v77, v78
    v_max3_f32 v85, v85, v79, v80
    v_max3_f32 v85, v85, v81, v82
    v_max_f32 v85, v85, v83
    v_mov_b32 v86, v85
    s_nop 1
    v_permlane16_swap_b32 v85, v86
    v_max_f32 v85, v85, v86
    v_mov_b32 v86, v85
    s_nop 1
    v_permlane32_swap_b32 v85, v86
    v_max_f32 v85, v85, v86
    v_mul_f32 v85, 0xbfb8aa3b, v85      ; -max*log2e
    ''')
    for i in range(12):
        k(f'v_fma_f32 v{72+i}, v{72+i}, s50, v85')
    for i in range(12):
        k(f'v_exp_f32 v{72+i}, v{72+i}')
    k('s_nop 0')
    k('v_add_f32 v86, v72, v73')
    for i in range(2,12): k(f'v_add_f32 v86, v86, v{72+i}')
    k(f'''
    v_mov_b32 v87, v86
    s_nop 1
    v_permlane16_swap_b32 v86, v87
    v_add_f32 v86, v86, v87
    v_mov_b32 v87, v86
    s_nop 1
    v_permlane32_swap_b32 v86, v87
    v_add_f32 v86, v86, v87
    v_rcp_f32 v86, v86
    s_nop 0
    ''')
    for i in range(12): k(f'v_mul_f32 v{72+i}, v{72+i}, v86')
    k(f'''
    v_cvt_pk_bf16_f32 v88, v76, v77
    v_cvt_pk_bf16_f32 v89, v78, v79
    v_cvt_pk_bf16_f32 v90, v80, v81
    v_cvt_pk_bf16_f32 v91, v82, v83
    v_cvt_pk_bf16_f32 v92, v72, v73
    v_cvt_pk_bf16_f32 v93, v74, v75
    s_mov_b64 exec, s[30:31]
    buffer_store_dwordx4 v[88:91], v246, s[20:23], s41 offen sc1
    buffer_store_dwordx2 v[92:93], v247, s[20:23], s41 offen sc1
    s_mov_b64 exec, -1
    ''')
    stamp(3)
    k(f'''
{nm}_snext:
    s_add_u32 s40, s40, 7168
    s_add_u32 s41, s41, 16384
    s_mov_b32 s47, s48
    s_add_u32 s42, s42, 1
    s_cmp_lt_u32 s42, 64
    s_cbranch_scc1 {nm}_sloop
    s_endpgm
    ''')
    k(f'''
{nm}_ucu:
    s_sub_u32 s24, s2, 16            ; cb
    v_mul_u32_u24 v5, 896, v2
    v_lshl_add_u32 v5, v3, 4, v5
    s_lshl_b32 s25, s3, 2
    s_add_u32 s25, s25, 16
    s_mul_i32 s25, s25, 448
    s_lshl_b32 s26, s24, 4
    s_add_u32 s25, s25, s26
    s_mul_i32 s25, s25, 896
    s_add_u32 s25, s25, {WT}
    ''')
    for hh in range(4):
        for ks in range(14):
            i=hh*14+ks
            k(f'buffer_load_dwordx4 a[{i*4}:{i*4+3}], v5, s[20:23], s25 offen offset:{ks*64}')
        if hh<3: k(f's_add_u32 s25, s25, {448*896}')
    k(f'''
    s_mul_i32 s25, s3, 1792
    v_lshlrev_b32 v6, 4, v1
    v_add_u32 v6, s25, v6
    s_mov_b32 s36, -1
    s_mov_b32 s37, 0x0000ffff
    v_lshl_add_u32 v7, v3, 3, v4
    v_lshlrev_b32 v8, 3, v7
    v_add_u32 v8, 512, v8
    v_lshlrev_b32 v7, 4, v7
    v_lshlrev_b32 v9, 5, v2
    v_lshl_add_u32 v9, v3, 3, v9
    s_lshl_b32 s26, s24, 8
    v_add_u32 v9, s26, v9
    v_lshlrev_b32 v10, 4, v2
    v_lshl_add_u32 v10, v3, 3, v10
    s_lshl_b32 s26, s24, 8
    v_add_u32 v10, s26, v10
    v_lshlrev_b32 v4, 5, v4
    v_lshrrev_b32 v11, 1, v3
    v_lshl_add_u32 v4, v11, 8, v4
    v_and_b32 v11, 1, v3
    v_lshl_add_u32 v4, v11, 4, v4
    v_add_u32 v4, 4096, v4
    v_lshlrev_b32 v11, 4, v1
    s_lshl_b32 s26, s3, 10
    v_add_u32 v12, s26, v11
    v_cmp_gt_u32 s[30:31], 8, v2
    v_cmp_gt_u32 s[32:33], 2, v3
    s_mov_b32 s40, {MEML}
    s_lshl_b32 s41, s3, 12
    s_add_u32 s41, s41, {PXL}
    s_mov_b32 s42, 0
    s_mov_b32 s43, {XN}
    s_mul_i32 s44, s3, {4*448*16}
    s_add_u32 s44, s44, {BT}
    ''')
    XF=16
    MF=128
    AC=184
    PK=232
    XB=11264
    k(f'''
    s_mov_b32 s34, -1
    s_mov_b32 s35, 0x00ffffff
    v_lshlrev_b32 v13, 4, v1
    v_mov_b32 v{XF+32}, v13
    s_mul_i32 s43, s3, {8*896}
    s_add_u32 s43, s43, {XN}
    s_mul_i32 s46, s3, {8*RS}
    s_add_u32 s46, s46, {XB}
    v_mul_u32_u24 v5, {RS}, v2
    v_lshl_add_u32 v5, v3, 4, v5
    v_add_u32 v5, {XB}, v5
    s_mov_b32 s47, 0
    ''')
    def udma(bufsel):
        k('s_mov_b64 exec, s[34:35]')
        k(f's_add_u32 s48, s46, {bufsel}')
        k('s_mov_b32 s49, s43')
        for r in range(8):
            k('s_mov_b32 m0, s48')
            k('s_nop 0')
            k(f'buffer_load_dwordx4 v{XF+32}, s[20:23], s49 offen lds')
            if r<7:
                k(f's_add_u32 s48, s48, {RS}'); k('s_add_u32 s49, s49, 896')
        k('s_mov_b64 exec, -1')
        k(f's_add_u32 s43, s43, {32*896}')
    udma('s47')
    k('s_waitcnt vmcnt(0)\ns_barrier')
    k(f'{nm}_uloop:')
    stamp(0,14,15)
    k(f's_xor_b32 s51, s47, {32*RS}')
    k(f's_cmp_ge_u32 s42, 63\ns_cbranch_scc1 {nm}_unox')
    udma('s51')
    k(f'{nm}_unox:')
    k(f'v_add_u32 v{XF+33}, s47, v5')
    k(f'v_add_u32 v{XF+34}, {16*RS}, v{XF+33}')
    def xread(ks):
        for t in range(2):
            b=XF+((ks%4)*2+t)*4
            k(f'ds_read_b128 v[{b}:{b+3}], v{XF+33+t} offset:{ks*64}')
    xread(0); xread(1); xread(2)
    for ks in range(14):
        if ks+3<14: xread(ks+3); k('s_waitcnt lgkmcnt(6)')
        else: k(f's_waitcnt lgkmcnt({2*(13-ks)})')
        for t in range(2):
            for hh in range(4):
                a=AC+(t*4+hh)*4; b=XF+((ks%4)*2+t)*4; w=(hh*14+ks)*4
                c=f'v[{a}:{a+3}]' if ks>0 else '0'
                k(f'v_mfma_f32_16x16x32_bf16 v[{a}:{a+3}], v[{b}:{b+3}], a[{w}:{w+3}], {c}')
    k('s_mov_b32 s47, s51')
    k('s_nop 7')
    for hh in range(4):
        for t in range(2):
            a=AC+(t*4+hh)*4; p=PK+hh*6+t*2
            k(f'v_cvt_pk_bf16_f32 v{p}, v{a}, v{a+1}\nv_cvt_pk_bf16_f32 v{p+1}, v{a+2}, v{a+3}')
    stamp(1,14,15)
    k(f'''
    v_mov_b32 v{MF+4}, 0
    v_mov_b32 v{MF+5}, 0
    v_mov_b32 v{MF+6}, 0
    v_mov_b32 v{MF+7}, 0
{nm}_upoll:
    buffer_load_dwordx4 v[{MF}:{MF+3}], v6, s[20:23], s40 offen sc1
    s_mov_b64 exec, s[36:37]
    buffer_load_dwordx4 v[{MF+4}:{MF+7}], v6, s[20:23], s40 offen offset:1024 sc1
    s_mov_b64 exec, -1
    s_waitcnt vmcnt(0)
    v_max3_u32 v13, v{MF}, v{MF+2}, v{MF+4}
    v_max_u32 v13, v13, v{MF+6}
    v_cmp_eq_u32 vcc, -1, v13
    s_cbranch_vccnz {nm}_upoll
    ds_write_b128 v6, v[{MF}:{MF+3}] offset:4096
    s_mov_b64 exec, s[36:37]
    ds_write_b128 v6, v[{MF+4}:{MF+7}] offset:5120
    s_mov_b64 exec, -1
    s_waitcnt lgkmcnt(0)
    s_barrier
    ''')
    for ks in range(14):
        k(f'ds_read_b128 v[{MF+ks*4}:{MF+3+ks*4}], v4 offset:{ks*512}')
    stamp(2,14,15)
    for ks in range(14):
        k(f's_waitcnt lgkmcnt({13-ks})')
        for hh in range(4):
            a=AC+(8+hh)*4; b=MF+ks*4; w=(hh*14+ks)*4
            c=f'v[{a}:{a+3}]' if ks>0 else '0'
            k(f'v_mfma_f32_16x16x32_bf16 v[{a}:{a+3}], v[{b}:{b+3}], a[{w}:{w+3}], {c}')
    k('s_nop 7')
    for hh in range(4):
        a=AC+(8+hh)*4; p=PK+hh*6+4
        k(f'v_cvt_pk_bf16_f32 v{p}, v{a}, v{a+1}\nv_cvt_pk_bf16_f32 v{p+1}, v{a+2}, v{a+3}')
    k('s_mov_b64 exec, s[32:33]\ns_mov_b32 s45, s44')
    for hh in range(4):
        p=PK+hh*6+4
        k(f'buffer_store_dwordx2 v[{p}:{p+1}], v10, s[20:23], s45 offen')
        if hh<3: k(f's_add_u32 s45, s45, {448*16}')
    k('s_mov_b64 exec, -1')
    stamp(3,14,15)
    k(f'{nm}_ppoll:')
    for hh in range(4):
        b=MF+hh*8
        k(f'buffer_load_dwordx4 v[{b}:{b+3}], v7, s[20:23], s41 offen offset:{hh*1024} sc1')
        k(f'buffer_load_dwordx2 v[{b+4}:{b+5}], v8, s[20:23], s41 offen offset:{hh*1024} sc1')
    k('s_waitcnt vmcnt(0)')
    regs=[MF+hh*8+i for hh in range(4) for i in range(6)]
    k(f'v_max3_u32 v13, v{regs[0]}, v{regs[1]}, v{regs[2]}')
    i=3
    while i<len(regs):
        if i+1<len(regs): k(f'v_max3_u32 v13, v13, v{regs[i]}, v{regs[i+1]}'); i+=2
        else: k(f'v_max_u32 v13, v13, v{regs[i]}'); i+=1
    k(f'v_cmp_eq_u32 vcc, -1, v13\ns_cbranch_vccnz {nm}_ppoll')
    stamp(4,14,15)
    OA=AC
    for hh in range(4):
        b=MF+hh*8; p=PK+hh*6
        c=f'v[{OA}:{OA+3}]' if hh>0 else '0'
        k(f'v_mfma_f32_16x16x32_bf16 v[{OA}:{OA+3}], v[{p}:{p+3}], v[{b}:{b+3}], {c}')
    for hh in range(4):
        b=MF+hh*8; p=PK+hh*6
        c=f'v[{OA+4}:{OA+7}]' if hh>0 else '0'
        k(f'v_mfma_f32_16x16x16_bf16 v[{OA+4}:{OA+7}], v[{p+4}:{p+5}], v[{b+4}:{b+5}], {c}')
    k(f'''
    s_nop 7
    s_nop 1
    v_add_f32 v{OA}, v{OA}, v{OA+4}
    v_add_f32 v{OA+1}, v{OA+1}, v{OA+5}
    v_add_f32 v{OA+2}, v{OA+2}, v{OA+6}
    v_add_f32 v{OA+3}, v{OA+3}, v{OA+7}
    ds_write_b128 v12, v[{OA}:{OA+3}]
    s_waitcnt lgkmcnt(0)
    s_barrier
    s_cmp_lg_u32 s3, 0
    s_cbranch_scc1 {nm}_unext
    ds_read_b128 v[{OA+4}:{OA+7}], v11 offset:1024
    ds_read_b128 v[{OA+8}:{OA+11}], v11 offset:2048
    ds_read_b128 v[{OA+12}:{OA+15}], v11 offset:3072
    s_waitcnt lgkmcnt(0)
    ''')
    for i in range(4):
        k(f'v_add_f32 v{OA+i}, v{OA+i}, v{OA+4+i}\nv_add_f32 v{OA+8+i}, v{OA+8+i}, v{OA+12+i}')
    for i in range(4): k(f'v_add_f32 v{OA+i}, v{OA+i}, v{OA+8+i}')
    k(f'''
    v_cvt_pk_bf16_f32 v{OA}, v{OA}, v{OA+1}
    v_cvt_pk_bf16_f32 v{OA+1}, v{OA+2}, v{OA+3}
    s_add_u32 s45, s40, 7168
    s_mov_b64 exec, s[30:31]
    buffer_store_dwordx2 v[{OA}:{OA+1}], v9, s[20:23], s45 offen sc1
    s_mov_b64 exec, -1
    ''')
    stamp(5,14,15)
    k(f'''
{nm}_unext:
    s_barrier
    s_add_u32 s40, s40, 7168
    s_add_u32 s41, s41, 16384
    s_add_u32 s44, s44, {16*448*16}
    s_add_u32 s42, s42, 1
    s_cmp_lt_u32 s42, 64
    s_cbranch_scc1 {nm}_uloop
{nm}_end:
    ''')
    k.L.insert(2,'    s_mov_b32 s50, 0x3fb8aa3b')
    return k
```

```python
from genlib import *
def make_gu():
    k=Kern('gu_kernel', 392, 256, vgpr=168, sgpr=60)
    k(f'''
    s_cmp_ge_u32 s2, 392
    s_cbranch_scc1 gu_end
    s_load_dwordx4 s[4:7], s[0:1], {KA_WQ}
    s_load_dwordx2 s[12:13], s[0:1], {KA_WV}
    s_load_dwordx2 s[14:15], s[0:1], {KA_WS}
    v_and_b32 v1, 63, v0
    v_lshrrev_b32 v2, 6, v0
    s_nop 0
    v_readfirstlane_b32 s3, v2
    v_and_b32 v2, 15, v1      ; l&15
    v_lshrrev_b32 v3, 4, v1   ; g
    s_lshl_b32 s24, s2, 2
    s_add_u32 s24, s24, s3          ; W 0..1567
    s_cmp_ge_u32 s24, 784
    s_cselect_b32 s25, 1, 0         ; which
    s_mul_i32 s26, s25, 784
    s_sub_u32 s24, s24, s26         ; r
    s_mul_hi_u32 s26, s24, 87652394 ; /49 -> h
    s_mul_i32 s27, s26, 49
    s_sub_u32 s24, s24, s27         ; t
    s_mul_hi_u32 s27, s24, 613566757 ; db = t/7
    s_mul_i32 s28, s27, 7
    s_sub_u32 s28, s24, s28         ; cb
    s_waitcnt lgkmcnt(0)
    ''')
    k.srd(20,14,WS_SIZE)
    WSZ=448*16*256*2
    k(f'''
    s_cmp_eq_u32 s25, 0
    s_cbranch_scc0 gu_isU
    ''')
    k.srd(8,4,WSZ)
    k.srd(16,6,WSZ)
    k(f'''
    s_mov_b32 s29, 8192
    s_lshl_b32 s30, s26, 9          ; B base = h*512
    s_mov_b32 s31, 0x3d800000       ; 1/16
    s_branch gu_common
gu_isU:
    ''')
    k.srd(8,12,WSZ)
    k.srd(16,14,WS_SIZE)
    k(f'''
    s_mov_b32 s29, 512
    s_mul_i32 s30, s26, 229376
    s_add_u32 s30, s30, {WO2T}
    s_mov_b32 s31, 0x3f800000
gu_common:
    v_lshlrev_b32 v4, 13, v2
    v_lshl_add_u32 v4, v3, 4, v4
    v_mul_lo_u32 v5, v2, s29
    v_lshl_add_u32 v5, v3, 4, v5
    s_lshl_b32 s32, s27, 19          ; db*64*8192
    s_lshl_b32 s33, s26, 9
    s_add_u32 s32, s32, s33
    s_add_u32 s33, s32, 131072
    s_add_u32 s34, s33, 131072
    s_add_u32 s35, s34, 131072
    s_lshl_b32 s36, s28, 6           ; cb*64
    s_mul_i32 s36, s36, s29
    s_add_u32 s36, s36, s30
    s_lshl_b32 s40, s29, 4
    s_add_u32 s37, s36, s40
    s_add_u32 s38, s37, s40
    s_add_u32 s39, s38, s40
    ''')
    ACC=8
    BUF=72
    for i in range(64): k(f'v_mov_b32 v{ACC+i}, 0')
    def loads(ks):
        b=BUF+(ks%3)*32
        for mt in range(4): k(f'buffer_load_dwordx4 v[{b+mt*4}:{b+mt*4+3}], v4, s[8:11], s{32+mt} offen offset:{ks*64}')
        for nt in range(4): k(f'buffer_load_dwordx4 v[{b+16+nt*4}:{b+16+nt*4+3}], v5, s[16:19], s{36+nt} offen offset:{ks*64}')
    loads(0); loads(1)
    for ks in range(8):
        if ks+2<8:
            loads(ks+2); k('s_waitcnt vmcnt(16)')
        elif ks+1<8: k('s_waitcnt vmcnt(8)')
        else: k('s_waitcnt vmcnt(0)')
        b=BUF+(ks%3)*32
        for mt in range(4):
            for nt in range(4):
                a=ACC+(mt*4+nt)*4
                k(f'v_mfma_f32_16x16x32_bf16 v[{a}:{a+3}], v[{b+mt*4}:{b+mt*4+3}], v[{b+16+nt*4}:{b+16+nt*4+3}], v[{a}:{a+3}]')
    k(f'''
    s_nop 7
    s_nop 7
    v_mul_u32_u24 v6, 896, v2
    v_lshl_add_u32 v6, v3, 3, v6
    s_lshl_b32 s40, s25, 4
    s_add_u32 s40, s40, s26
    s_mul_i32 s40, s40, 448
    s_lshl_b32 s41, s28, 6
    s_add_u32 s40, s40, s41
    s_mul_i32 s40, s40, 896
    s_lshl_b32 s41, s27, 7
    s_add_u32 s40, s40, s41
    s_add_u32 s40, s40, {WT}
    s_add_u32 s41, s40, 14336
    s_add_u32 s42, s41, 14336
    s_add_u32 s43, s42, 14336
    ''')
    for mt in range(4):
        for nt in range(4):
            a=ACC+(mt*4+nt)*4
            for r in range(4): k(f'v_mul_f32 v{a+r}, s31, v{a+r}')
            k(f'v_cvt_pk_bf16_f32 v{a}, v{a}, v{a+1}')
            k(f'v_cvt_pk_bf16_f32 v{a+1}, v{a+2}, v{a+3}')
            k(f'buffer_store_dwordx2 v[{a}:{a+1}], v6, s[20:23], s{40+nt} offen offset:{mt*32}')
    k('gu_end:')
    return k
```

```python
from genlib import *
def make_prep():
    NW_T=1288
    NW_Z=256
    NW_S=(EXSZ//16+255)//256
    k=Kern('prep_kernel', NW_T+NW_Z+NW_S, 256, vgpr=32, sgpr=40)
    k(f'''
    s_load_dwordx4 s[4:7], s[0:1], {KA_WQKV}
    s_load_dwordx2 s[12:13], s[0:1], {KA_BWO}
    s_load_dwordx2 s[14:15], s[0:1], {KA_WS}
    s_load_dwordx2 s[16:17], s[0:1], {KA_MEM0}
    v_and_b32 v1, 63, v0
    v_lshrrev_b32 v2, 6, v0
    s_nop 0
    v_readfirstlane_b32 s3, v2
    s_waitcnt lgkmcnt(0)
    ''')
    k.srd(20,14,WS_SIZE)
    k(f'''
    s_cmp_ge_u32 s2, {NW_T}
    s_cbranch_scc1 prep_fill
    s_lshl_b32 s24, s2, 2
    s_add_u32 s24, s24, s3          ; W
    s_cmp_ge_u32 s24, 1176
    s_cbranch_scc1 prep_jb
    ; job a
    s_mul_hi_u32 s25, s24, 204522253   ; kb=W/21
    s_mul_i32 s26, s25, 21
    s_sub_u32 s26, s24, s26            ; nb
    s_mov_b32 s27, 2688
    s_mov_b32 s28, 896
    s_mov_b32 s29, {WQKVT}
    s_mov_b32 s30, 0
    ''')
    k.srd(8,4,448*1344*2)
    k(f'''
    s_branch prep_common
prep_jb:
    s_cmp_ge_u32 s24, 1568
    s_cbranch_scc1 prep_jc
    s_sub_u32 s24, s24, 1176
    s_mul_hi_u32 s25, s24, 613566757   ; /7
    s_mul_i32 s26, s25, 7
    s_sub_u32 s26, s24, s26
    s_mov_b32 s27, 896
    s_mov_b32 s28, 896
    s_mov_b32 s29, {WOT}
    s_mov_b32 s30, 0
    ''')
    k.srd(8,6,448*448*2)
    k(f'''
    s_branch prep_common
prep_jc:
    s_sub_u32 s24, s24, 1568
    s_mul_hi_u32 s31, s24, 19173962    ; /224 -> h
    s_mul_i32 s26, s31, 224
    s_sub_u32 s24, s24, s26            ; r
    s_mul_hi_u32 s25, s24, 613566757   ; kb=r/7
    s_mul_i32 s26, s25, 7
    s_sub_u32 s26, s24, s26            ; nb
    s_mov_b32 s27, 896
    s_mov_b32 s28, 512
    s_mul_i32 s30, s31, 229376
    s_add_u32 s29, s30, {WO2T}
    ''')
    k.srd(8,12,16*256*448*2)
    k(f'''
prep_common:
    s_mul_i32 s32, s25, s27
    s_lshl_b32 s32, s32, 3
    s_add_u32 s32, s32, s30
    s_lshl_b32 s33, s26, 7
    s_add_u32 s32, s32, s33
    v_lshlrev_b32 v3, 1, v1
    ''')
    for j in range(8):
        k(f'buffer_load_ushort v{8+j}, v3, s[8:11], s32 offen')
        if j<7: k('s_add_u32 s32, s32, s27')
    k(f'''
    s_lshl_b32 s33, s26, 6
    v_add_u32 v4, s33, v1
    v_mul_lo_u32 v4, v4, s28
    s_lshl_b32 s33, s25, 4
    s_add_u32 s33, s33, s29
    s_waitcnt vmcnt(0)
    v_lshl_or_b32 v16, v9, 16, v8
    v_lshl_or_b32 v17, v11, 16, v10
    v_lshl_or_b32 v18, v13, 16, v12
    v_lshl_or_b32 v19, v15, 16, v14
    buffer_store_dwordx4 v[16:19], v4, s[20:23], s33 offen
    s_endpgm
prep_fill:
    s_cmp_ge_u32 s2, {NW_T+NW_Z}
    s_cbranch_scc1 prep_sent
    s_sub_u32 s24, s2, {NW_T}
    s_lshl_b32 s24, s24, 8
    v_add_u32 v3, s24, v0
    v_lshlrev_b32 v3, 6, v3
    v_mov_b32 v4, 0
    v_mov_b32 v5, 0
    s_mov_b32 s25, {QOFF+56}
    buffer_store_dwordx2 v[4:5], v3, s[20:23], s25 offen
    s_endpgm
prep_sent:
    s_cmp_ge_u32 s2, {NW_T+NW_Z+NW_S}
    s_cbranch_scc1 prep_end
    s_sub_u32 s24, s2, {NW_T+NW_Z}
    s_lshl_b32 s24, s24, 8
    v_add_u32 v3, s24, v0
    v_lshlrev_b32 v3, 4, v3
    ''')
    k.srd(8,16,7168)
    k(f'''
    s_mov_b32 s25, {65*7168}
    v_subrev_u32 v4, s25, v3
    v_cmp_le_u32 vcc, s25, v3
    s_nop 1
    v_cndmask_b32 v4, v3, v4, vcc     ; o'
    v_lshrrev_b32 v5, 8, v4           ; cb
    v_bfe_u32 v6, v4, 5, 3            ; i
    v_and_b32 v7, 16, v4              ; half*16
    v_mul_u32_u24 v6, 896, v6
    v_lshl_add_u32 v6, v5, 5, v6
    v_add_u32 v6, v6, v7
    s_mov_b32 s25, 7168
    v_cmp_gt_u32 vcc, s25, v4
    v_mov_b32 v7, 0x7fffffff
    s_nop 0
    v_cndmask_b32 v6, v7, v6, vcc
    buffer_load_dwordx4 v[8:11], v6, s[8:11], 0 offen
    s_mov_b32 s25, 7168
    v_cmp_gt_u32 vcc, s25, v4         ; o' < 7168
    s_mov_b32 s26, {2*65*7168}
    v_cmp_gt_u32 s[28:29], s26, v3
    s_and_b64 vcc, vcc, s[28:29]
    v_mov_b32 v12, -1
    s_waitcnt vmcnt(0)
    v_cndmask_b32 v8, v12, v8, vcc
    v_cndmask_b32 v9, v12, v9, vcc
    v_cndmask_b32 v10, v12, v10, vcc
    v_cndmask_b32 v11, v12, v11, vcc
    s_mov_b32 s26, {EXSZ}
    v_cmp_gt_u32 vcc, s26, v3
    s_and_saveexec_b64 s[28:29], vcc
    s_cbranch_execz prep_end
    s_mov_b32 s25, {EXOFF}
    buffer_store_dwordx4 v[8:11], v3, s[20:23], s25 offen
prep_end:
    ''')
    return k
```

```python
import sys
from genlib import *
from k_prep import make_prep
from k_gu import make_gu
from k_chain import make_chain
from k_a import *
from k_b import *
HEADER=open('interleave_layers__sliding_block__memory_aug_recurrent_mem_tr__prompt.s.ref').read().split('; Override launch')[0]
def main(out):
    prep=make_prep(); gu=make_gu(); a2=make_ka2()
    seq=[prep,gu]
    for l in range(2):
        seq+=[make_ka1(l),a2,make_ka3(l),make_kb1(l),make_chain(l),make_kb3(l)]
    kernels=[]
    for x in seq:
        if x not in kernels: kernels.append(x)
    launches=[(x,x.grid) for x in seq]
    open(out,'w').write(assemble(HEADER,kernels,launches))
if __name__=='__main__':
    main(sys.argv[1] if len(sys.argv)>1 else 'interleave_layers__sliding_block__memory_aug_recurrent_mem_tr__prompt.s')
```
